```python
import torch

def _softmax(x, axis=-1):
    return torch.softmax(x, dim=axis)
def _gelu(x):
    return torch.nn.functional.gelu(x, approximate="tanh")
def _silu(x):
    return torch.nn.functional.silu(x)
def _sigmoid(x):
    return torch.sigmoid(x)
def _layernorm(x, axis=-1, eps=1e-5):
    m = x.mean(dim=axis, keepdim=True)
    v = x.var(dim=axis, keepdim=True, unbiased=False)
    return (x - m) / torch.sqrt(v + eps)
def _scatter_add(tgt, idx, src, axis=0):
    return tgt.clone().index_add_(axis, idx, src)
def _segment_sum(src, seg, n):
    out = torch.zeros((n,) + src.shape[1:], dtype=src.dtype)
    return out.index_add_(0, seg, src)
def _pad(x, pw):
    flat = tuple(v for pair in reversed(pw) for v in pair)
    return torch.nn.functional.pad(x, flat)

kernel_name = 'concat_heads__gqa_block_cached__gqa_block_cached__near_ridge'

def setup_inputs():

    _w = (lambda a: (lambda t: t.to(torch.bfloat16) if t.is_floating_point() else t)(torch.as_tensor(a)))
    def _A_setup():
        B, Sq, D = 16, 128, 448
        Hq, Hkv, Sk, Dh = 16, 8, 1024, 256
        assert Hq % Hkv == 0, (Hq, Hkv)
        return {
            "x": _w((lambda *s: torch.randn(*s, dtype=torch.bfloat16) * 0.8)(B, Sq, D)),
            "k_cache": _w((lambda *s: torch.randn(*s, dtype=torch.bfloat16) * 0.8)(B, Hkv, Sk, Dh)),
            "v_cache": _w((lambda *s: torch.randn(*s, dtype=torch.bfloat16) * 0.05)(B, Hkv, Sk, Dh)),
            "wq": _w((lambda *s: torch.randn(*s, dtype=torch.bfloat16) * 0.8)(D, Hq * Dh) * (D ** -0.5)),
            "wo": _w((lambda *s: torch.randn(*s, dtype=torch.bfloat16) * 0.05)(Hq * Dh, D) * ((Hq * Dh) ** -0.5)),
        }
    _A_in = _A_setup()

    def _B_setup():
        B, Sq, D = 16, 128, 448
        Hq, Hkv, Sk, Dh = 16, 8, 1024, 256
        assert Hq % Hkv == 0, (Hq, Hkv)
        return {
            "x": _w((lambda *s: torch.randn(*s, dtype=torch.bfloat16) * 0.8)(B, Sq, D)),
            "k_cache": _w((lambda *s: torch.randn(*s, dtype=torch.bfloat16) * 0.8)(B, Hkv, Sk, Dh)),
            "v_cache": _w((lambda *s: torch.randn(*s, dtype=torch.bfloat16) * 0.05)(B, Hkv, Sk, Dh)),
            "wq": _w((lambda *s: torch.randn(*s, dtype=torch.bfloat16) * 0.8)(D, Hq * Dh) * (D ** -0.5)),
            "wo": _w((lambda *s: torch.randn(*s, dtype=torch.bfloat16) * 0.05)(Hq * Dh, D) * ((Hq * Dh) ** -0.5)),
        }
    _B_in = _B_setup()

    return {
        "A_x": _A_in["x"],
        "A_k_cache": _A_in["k_cache"],
        "A_v_cache": _A_in["v_cache"],
        "A_wq": _A_in["wq"],
        "A_wo": _A_in["wo"],
        "B_x": _B_in["x"],
        "B_k_cache": _B_in["k_cache"],
        "B_v_cache": _B_in["v_cache"],
        "B_wq": _B_in["wq"],
        "B_wo": _B_in["wo"],
    }

def reference(A_x, A_k_cache, A_v_cache, A_wq, A_wo, B_x, B_k_cache, B_v_cache, B_wq, B_wo):
    def _A_ref(x, k_cache, v_cache, wq, wo):
        B, Sq, D = x.shape
        Hq, Dh = 16, 256
        Hkv = k_cache.shape[1]
        rep = Hq // Hkv
        q = (lambda x, *d: x.permute(*d))((x @ wq).reshape(B, Sq, Hq, Dh), 0, 2, 1, 3)
        k = (lambda x, n, axis: torch.repeat_interleave(x, n, dim=axis))(k_cache, rep, axis=1)
        v = (lambda x, n, axis: torch.repeat_interleave(x, n, dim=axis))(v_cache, rep, axis=1)
        scores = torch.einsum("bhqd,bhkd->bhqk", q, k) * (Dh ** -0.5)
        p = _softmax(scores, axis=-1)
        o = torch.einsum("bhqk,bhkd->bhqd", p, v)
        return (lambda x, *d: x.permute(*d))(o, 0, 2, 1, 3).reshape(B, Sq, Hq * Dh) @ wo

    def _B_ref(x, k_cache, v_cache, wq, wo):
        B, Sq, D = x.shape
        Hq, Dh = 16, 256
        Hkv = k_cache.shape[1]
        rep = Hq // Hkv
        q = (lambda x, *d: x.permute(*d))((x @ wq).reshape(B, Sq, Hq, Dh), 0, 2, 1, 3)
        k = (lambda x, n, axis: torch.repeat_interleave(x, n, dim=axis))(k_cache, rep, axis=1)
        v = (lambda x, n, axis: torch.repeat_interleave(x, n, dim=axis))(v_cache, rep, axis=1)
        scores = torch.einsum("bhqd,bhkd->bhqk", q, k) * (Dh ** -0.5)
        p = _softmax(scores, axis=-1)
        o = torch.einsum("bhqk,bhkd->bhqd", p, v)
        return (lambda x, *d: x.permute(*d))(o, 0, 2, 1, 3).reshape(B, Sq, Hq * Dh) @ wo

    a = _A_ref(A_x, A_k_cache, A_v_cache, A_wq, A_wo)
    b = _B_ref(B_x, B_k_cache, B_v_cache, B_wq, B_wo)
    return torch.concatenate([a, b], axis=-1)
```

```python
import re

TRANS = ("v_exp_f32", "v_log_f32", "v_rcp_f32", "v_rsq_f32", "v_sqrt_f32", "v_sin_f32", "v_cos_f32")

def parse_regs(op):
    op = op.strip()
    if op.startswith("-"): op = op[1:]
    if op.startswith("abs(") or op.startswith("|"):
        op = op.strip("|"); op = op.replace("abs(", "").rstrip(")")
    m = re.fullmatch(r"([vas])(\d+)", op)
    if m: return [(m.group(1), int(m.group(2)))]
    m = re.fullmatch(r"([vas])\[(\d+):(\d+)\]", op)
    if m: return [(m.group(1), i) for i in range(int(m.group(2)), int(m.group(3)) + 1)]
    if op == "vcc": return [("vcc", 0)]
    if op == "m0": return [("m0", 0)]
    if op == "exec": return [("exec", 0)]
    return []

class Ins:
    __slots__ = ("text", "mn", "kind", "rd", "wr", "A", "B", "C", "tag", "cost")
    def __init__(self, text, tag=None):
        self.text = text; self.tag = tag
        t = text.split(";")[0].strip()
        self.rd = []; self.wr = []; self.A = self.B = self.C = []
        if t.endswith(":"):
            self.mn = "label"; self.kind = "label"; self.cost = 0; return
        parts = t.split(None, 1)
        mn = parts[0]; self.mn = mn
        rest = parts[1] if len(parts) > 1 else ""
        ops = []; cur = ""; depth = 0
        for ch in rest:
            if ch in "[(": depth += 1
            if ch in "])": depth -= 1
            if ch == "," and depth == 0: ops.append(cur.strip()); cur = ""
            else: cur += ch
        if cur.strip(): ops.append(cur.strip())
        mods = []
        if ops:
            last = ops[-1].split()
            ops[-1] = last[0]; mods = last[1:]
        R = [parse_regs(o) for o in ops]
        self.cost = 1
        if mn.startswith("v_mfma"):
            self.kind = "mfma"; self.wr = R[0]; self.A = R[1]; self.B = R[2]; self.C = R[3]
            self.rd = R[1] + R[2] + R[3]; self.cost = 2
        elif mn.startswith("ds_read") or mn.startswith("ds_bpermute"):
            self.kind = "ds"; self.wr = R[0]; self.rd = sum(R[1:], [])
        elif mn.startswith("ds_write"):
            self.kind = "ds"; self.rd = sum(R, [])
        elif mn.startswith("buffer_load") and "lds" in mods:
            self.kind = "dma"; self.rd = sum(R, []) + [("m0", 0)]
        elif mn.startswith("buffer_load") or mn.startswith("global_load"):
            self.kind = "vload"; self.wr = R[0]; self.rd = sum(R[1:], [])
        elif mn.startswith("buffer_store") or mn.startswith("global_store"):
            self.kind = "vstore"; self.rd = sum(R, [])
            self.A = R[0] if mn.startswith("buffer") else R[1]
        elif mn.startswith("global_atomic") or mn.startswith("buffer_atomic"):
            self.kind = "vload" if "sc0" in mods else "vstore"
            if "sc0" in mods and mn.startswith("global"):
                self.wr = R[0]; self.rd = sum(R[1:], [])
            elif "sc0" in mods:
                self.wr = R[0]; self.rd = sum(R, [])
            else:
                self.rd = sum(R, [])
        elif mn in ("buffer_wbl2", "buffer_inv"):
            self.kind = "vstore"
        elif mn.startswith("s_load") or mn in ("s_memtime", "s_memrealtime"):
            self.kind = "smem"; self.wr = R[0]; self.rd = sum(R[1:], [])
        elif mn == "s_waitcnt": self.kind = "wait"
        elif mn == "s_barrier": self.kind = "barrier"
        elif mn == "s_nop":
            self.kind = "nop"; self.cost = int(ops[0], 0) + 1
        elif mn in ("s_endpgm", "s_setprio", "s_sleep"): self.kind = "misc"
        elif mn.startswith("s_cbranch") or mn in ("s_branch", "s_setpc_b64", "s_call_b64"):
            self.kind = "branch"
            if "scc" in mn: self.rd = [("scc", 0)]
            if "vcc" in mn: self.rd = [("vcc", 0)]
            if "exec" in mn: self.rd = [("exec", 0)]
            if mn == "s_setpc_b64": self.rd = R[0]
            if mn == "s_call_b64": self.wr = R[0]
        elif mn.startswith("s_cmp") or mn.startswith("s_bitcmp"):
            self.kind = "salu"; self.rd = sum(R, []); self.wr = [("scc", 0)]
        elif mn.startswith("s_"):
            self.kind = "salu"; self.wr = R[0] + [("scc", 0)]; self.rd = sum(R[1:], [])
            if mn.startswith("s_mov") or mn.startswith("s_cselect") or mn.startswith("s_mul") or mn.startswith("s_getpc") or mn.startswith("s_getreg"):
                self.wr = R[0]
            if mn.startswith("s_cselect") or mn.startswith("s_addc") or mn.startswith("s_subb"): self.rd = self.rd + [("scc", 0)]
            if mn in ("s_addk_i32", "s_mulk_i32"): self.rd = self.rd + R[0]
            if "saveexec" in mn: self.wr = self.wr + [("exec", 0)]; self.rd = self.rd + [("exec", 0)]
        elif mn.startswith("v_"):
            base = mn.replace("_e32", "").replace("_e64", "")
            self.kind = "trans" if base in TRANS else "valu"
            if base in TRANS: self.cost = 2
            if base.startswith("v_permlane32_swap") or base.startswith("v_permlane16_swap"):
                self.wr = R[0] + R[1]; self.rd = R[0] + R[1]; self.kind = "permlane"
            elif base in ("v_add_co_u32", "v_sub_co_u32"):
                self.wr = R[0] + R[1]; self.rd = sum(R[2:], [])
            elif base in ("v_addc_co_u32",):
                self.wr = R[0] + R[1]; self.rd = sum(R[2:], [])
            else:
                self.wr = R[0]; self.rd = sum(R[1:], [])
                if base in ("v_fmac_f32",): self.rd = self.rd + R[0]
        else:
            raise ValueError("unknown instr: " + text)
    def is_valu(self): return self.kind in ("valu", "trans", "permlane")
    def __repr__(self): return self.text

class Stream:
    def __init__(self):
        self.ins = []
        self.lg = []
        self.vm = []
        self.smem = set()
        self.nops = []
    def raw(self, text, tag=None):
        i = Ins(text, tag); self.ins.append(i); return i
    def wait_lg(self, n):
        assert n <= 15
        if len(self.lg) > n:
            self.raw(f"s_waitcnt lgkmcnt({n})"); self.lg = self.lg[len(self.lg) - n:] if n else []
    def wait_vm(self, n, force=False):
        assert n <= 63, n
        if len(self.vm) > n or force:
            self.raw(f"s_waitcnt vmcnt({n})"); self.vm = self.vm[len(self.vm) - n:] if n else []
    def wait_tag(self, pred):
        last = -1
        for k, (tag, _) in enumerate(self.vm):
            if tag is not None and pred(tag): last = k
        if last >= 0: self.wait_vm(len(self.vm) - 1 - last)
    def emit(self, text, tag=None):
        i = text if isinstance(text, Ins) else Ins(text, tag)
        touched = set(i.rd) | set(i.wr)
        if touched & self.smem:
            self.raw("s_waitcnt lgkmcnt(0)"); self.smem = set(); self.lg = []
        need = -1
        for k, regs in enumerate(self.lg):
            if regs & touched: need = k
        needv = -1
        for k, (tag_, regs) in enumerate(self.vm):
            if regs & touched: needv = k
        if need >= 0 and needv >= 0:
            n = len(self.lg) - 1 - need; nv = len(self.vm) - 1 - needv
            assert n <= 15 and nv <= 63
            self.raw(f"s_waitcnt vmcnt({nv}) lgkmcnt({n})")
            self.lg = self.lg[need + 1:]; self.vm = self.vm[needv + 1:]
        elif need >= 0:
            self.wait_lg(len(self.lg) - 1 - need)
        elif needv >= 0:
            self.wait_vm(len(self.vm) - 1 - needv)
        if i.kind == "ds":
            assert not self.smem
            if len(self.lg) >= 15: pass
            self.lg.append(set(i.wr))
        elif i.kind in ("dma", "vstore"): self.vm.append((i.tag, set()))
        elif i.kind == "vload": self.vm.append((i.tag, set(i.wr)))
        elif i.kind == "smem": self.smem |= set(i.wr)
        elif i.kind == "wait":
            m = re.search(r"lgkmcnt\((\d+)\)", i.text)
            if m:
                n = int(m.group(1)); self.lg = self.lg[len(self.lg) - n:] if n else []
                if n == 0: self.smem = set()
            m = re.search(r"vmcnt\((\d+)\)", i.text)
            if m:
                n = int(m.group(1)); self.vm = self.vm[len(self.vm) - n:] if n else []
        short = check_hazards(self.ins[-40:] + [i], only_last=True)
        if short:
            k = max(short); self.nops.append((len(self.ins), k, i.text))
            self.raw(f"s_nop {k - 1}")
        self.ins.append(i); return i

def check_hazards(ins, name="", only_last=False):
    probs = []
    n = len(ins)
    W = 24
    def states(i):
        x = ins[i]
        if x.kind == "label": return 0
        if x.kind == "nop": return x.cost
        return 1
    for j in (range(n) if not only_last else [n - 1]):
        c = ins[j]
        if c.kind in ("label", "nop", "wait", "barrier"): continue
        if not only_last and ("scc", 0) in c.rd:
            i = j - 1
            while i >= 0 and ("scc", 0) not in ins[i].wr: i -= 1
            w = ins[i].mn if i >= 0 else None
            ok = (w == "s_add_u32") if c.mn.startswith("s_addc") else (w is not None and (w.startswith("s_cmp") or w.startswith("s_bitcmp")))
            if not ok: probs.append(f"{name} SCC clobber: [{i}] {ins[i].text} -> [{j}] {c.text}")
        crd = set(c.rd); cwr = set(c.wr)
        dist = 0
        i = j - 1
        while i >= 0 and dist < 20:
            p = ins[i]
            pwr = set(p.wr)
            need = 0; why = ""
            if p.kind == "mfma":
                passes = 8 if "32x32" in p.mn else 4
                D = pwr
                big = {8: 12, 4: 8}[passes]
                if c.kind == "mfma":
                    if D & (set(c.A) | set(c.B)): need = max(need, big); why = "mfma D->A/B"
                    cc = set(c.C)
                    if D & cc and (cc != D or c.mn != p.mn): need = max(need, {8: 10, 4: 6}[passes]); why = "mfma D->C overlap"
                    if D & cwr and not (D & cc): need = max(need, big); why = "mfma D->D WAW"
                elif c.is_valu() or c.kind in ("ds", "dma", "vload", "vstore"):
                    if D & (crd | cwr): need = max(need, big); why = "mfma D->valu/mem"
                if c.is_valu() and set(p.C) & cwr: need = max(need, {8: 7, 4: 3}[passes]); why = why or "mfma C WAR"
            elif p.is_valu():
                vw = {r for r in pwr if r[0] in "va" and r[0] != "vcc"}
                vw = {r for r in pwr if r[0] in ("v", "a")}
                sw = {r for r in pwr if r[0] in ("s", "vcc")}
                if c.kind == "mfma" and vw & crd: need = max(need, 2); why = "valu->mfma"
                if p.kind == "trans" and c.is_valu() and c.kind != "trans" and vw & crd: need = max(need, 1); why = "trans->valu"
                if p.kind == "trans" and c.kind == "trans" and vw & crd: need = max(need, 1); why = "trans->trans"
                if c.kind == "permlane" and vw & crd: need = max(need, 2); why = "valu->permlane"
                if c.mn.startswith("v_readfirstlane") or c.mn.startswith("v_readlane"):
                    if vw & crd: need = max(need, 1); why = "valu->readlane"
                if c.is_valu() and sw & crd: need = max(need, 2); why = "valu sgpr->valu"
                if c.kind in ("dma", "vload", "vstore") and sw & crd: need = max(need, 5); why = "valu sgpr->vmem"
                if c.kind in ("salu", "branch") and sw & crd: need = max(need, 1); why = "valu sgpr->salu(pad)"
                if ("exec", 0) in pwr and c.kind == "mfma": need = max(need, 4); why = "exec->mfma"
            elif p.kind == "salu":
                if ("m0", 0) in pwr and c.kind == "dma": need = max(need, 1); why = "m0->dma"
            elif p.kind == "vstore":
                if len(p.A) >= 3 and set(p.A) & cwr: need = max(need, 2 if c.is_valu() else 1); why = "store data WAR"
            if need > dist:
                probs.append((need - dist) if only_last else f"{name} hazard {why}: need {need} have {dist}: [{i}] {p.text}  ->  [{j}] {c.text}")
            dist += states(i)
            i -= 1
    return probs
```

```python
import sys, struct, math
from asmlib import *

NAME = "concat_heads__gqa_block_cached__gqa_block_cached__near_ridge"
SLOT = 16640; NSLOT = 9; BLK = 1040; WOFF = 4160
LDS_BYTES = SLOT * NSLOT

def f2u(x): return struct.unpack("<I", struct.pack("<f", x))[0]

class Opt:
    nt_kv = True
    stamps = False
    budget = 5
    thr_log2 = 10
    store_mod = ""
    force_rare = False
    drop = ""
    step0 = False
    nt_w = False
    dma_lo = 1
    dma_hi = 30
    dma_inB = False

S_X, S_WQ, S_A, S_B, S_WO, S_WS = 4, 8, 12, 16, 20, 24
sW, sM0B, sOffA, sOffB, sGA, sGB, sStepA, sStepB, sT = 28, 29, 30, 31, 32, 33, 34, 35, 36
sKE, sVE, sKO, sVO, sTrip, sC, sThr, sT2 = 37, 38, 39, 40, 41, 42, 43, 44
sRet, sRet2 = 46, 48
sStamp = 50
S_DBG = 56
sLd = 64
vKrdL, vVrdL, vKrd, vVrd, vOffA, vOffB = 0, 1, 2, 3, 4, 5
vMC, vL, vTS = (6, 7), (8, 9), (10, 11)
vTMP = list(range(12, 24))
vFR = 24
vPA, vPB, vPC = 40, 48, 56
vS = (64, 96)
vQ = 128

def srd(b): return f"s[{b}:{b+3}]"
def vr(b, n): return f"v[{b}:{b+n-1}]"
def ar(b, n): return f"a[{b}:{b+n-1}]"

class Gen:
    def __init__(self, opt):
        self.o = opt
        self.st = Stream()
        self.M = []
        self.fixed = {}
        self.pre = {}
        self.queues = []
        self.marks = {}
    def at(self, g, item): self.fixed.setdefault(g, []).append(item)
    def before(self, i, item): self.pre.setdefault(i, []).append(item)
    def spread(self, ops, g0, g1):
        costs = [Ins(t).cost if isinstance(t, str) else 1 for t in ops]
        tot = sum(costs); n = g1 - g0 + 1; acc = 0
        for t, c in zip(ops, costs):
            g = g0 + min(n - 1, int(acc * n / tot)); acc += c
            self.at(g, t)
    def do(self, item):
        if callable(item): return item()
        if isinstance(item, tuple): i = self.st.emit(item[0], item[1])
        else: i = self.st.emit(item)
        return i.cost
    def run(self, lo, hi):
        st = self.st
        for i in range(lo, hi):
            for q in self.queues:
                while q and q[0][2] <= i: self.do(q.pop(0)[0])
            for it in self.pre.get(i, []): self.do(it)
            n0 = len(st.ins)
            st.emit(self.M[i])
            n1 = len(st.ins)
            for it in self.fixed.get(i, []): self.do(it)
            used = sum(x.cost for x in st.ins[n1:])
            for q in self.queues:
                while q and q[0][1] <= i and used < self.o.budget:
                    n2 = len(st.ins); self.do(q.pop(0)[0]); used += sum(x.cost for x in st.ins[n2:])

def build(opt):
    G = Gen(opt); st = G.st; E = st.emit
    kvmod = " nt" if opt.nt_kv else ""
    def slab_info(n):
        if n < 28:
            g, i7 = divmod(n, 7)
            return ("wq", i7 * 64 * 8192 + g * 256)
        if n == 28: return ("k", 0)
        if n <= 90:
            j, odd = divmod(n - 29, 2)
            return ("k", (j + 1) * 16384) if odd == 0 else ("v", j * 16384)
        if n == 92: return ("v", 31 * 16384)
        i = 0 if n == 91 else n - 92
        ng, dq = divmod(i, 4)
        return ("wo", dq * 128 * 896 + ng * 128)
    NSLAB = 120
    wo_slab = lambda i: 91 if i == 0 else 92 + i
    slot_of = {n: n % NSLOT for n in range(0, 99)}
    GS = {"wq": 16 * 8192, "k": 4096, "v": 4096, "wo": 32 * 896}
    vOffWq = vTMP[0]; vXoff = vTMP[1]; vWrd = vTMP[2:5]
    def dma_static(n, voff=None, srdreg=None):
        typ, off = slab_info(n)
        if voff is None: voff = {"wq": vOffWq, "k": vOffA, "v": vOffB, "wo": vOffA}[typ]
        if srdreg is None: srdreg = {"wq": S_WQ, "k": S_A, "v": S_B, "wo": S_WO}[typ]
        mod = kvmod if typ in ("k", "v") else (" nt" if opt.nt_w else "")
        ops = [f"s_add_u32 m0, s{sM0B}, {slot_of[n] * SLOT}"]
        for jj in range(4):
            ops.append(f"s_mov_b32 s{sT}, {off + jj * (GS[typ] - BLK)}")
            ops.append((f"buffer_load_dwordx4 v{voff}, {srd(srdreg)}, s{sT} offen offset:{jj * BLK}{mod} lds", ("slab", n)))
        return ops
    def certify(nmax):
        def f():
            st.wait_tag(lambda t: t[0] == "slab" and t[1] <= nmax)
            st.emit("s_barrier"); return 2
        return f
    def stamp(k):
        if not opt.stamps: return
        st.raw(f"s_memtime s[{sLd+2*k}:{sLd+2*k+1}]")
    def stamps_out(n):
        if not opt.stamps: return
        if opt.stamps: st.raw(f"s_memrealtime s[{sLd+2*n}:{sLd+2*n+1}]")
        E("s_waitcnt lgkmcnt(0)")
        for k in range(n + 1):
            E(f"v_mov_b32 v{vTMP[11]}, s{sLd+2*k}")
            E(f"buffer_store_dword v{vTMP[11]}, off, {srd(S_DBG)}, 0 offset:{k*4}")
        E(f"v_mov_b32 v{vTMP[11]}, s{sStamp}")
        E(f"buffer_store_dword v{vTMP[11]}, off, {srd(S_DBG)}, 0 offset:{(n+1)*4}")
        E(f"v_mov_b32 v{vTMP[11]}, s{sStamp+2}")
        E(f"buffer_store_dword v{vTMP[11]}, off, {srd(S_DBG)}, 0 offset:{(n+2)*4}")

    E("s_cmp_ge_u32 s2, 256")
    E("s_cbranch_scc1 L_end")
    if opt.stamps:
        st.raw(f"s_memtime s[{sStamp}:{sStamp+1}]"); st.raw(f"s_memrealtime s[{sStamp+2}:{sStamp+3}]")
    E(f"s_load_dwordx16 s[{sLd}:{sLd+15}], s[0:1], 0")
    E(f"s_load_dwordx4 s[{sLd+16}:{sLd+19}], s[0:1], 64")
    E(f"s_load_dwordx2 s[{sLd+20}:{sLd+21}], s[0:1], 96")
    t0, t1, t2, t3, t4, t5 = vTMP[5:11]
    lane = vS[0]
    vh, vG1, vr4, vcc_, vkap = vS[0] + 1, vS[0] + 2, vS[0] + 3, vS[0] + 4, vS[0] + 5
    E(f"v_lshrrev_b32 v{t0}, 6, v0")
    E(f"v_and_b32 v{lane}, 63, v0")
    E(f"v_readfirstlane_b32 s{sW}, v{t0}")
    E(f"v_lshrrev_b32 v{vh}, 5, v{lane}")
    E(f"v_bfe_u32 v{vG1}, v{lane}, 4, 1")
    E(f"v_bfe_u32 v{vr4}, v{lane}, 2, 2")
    E(f"v_and_b32 v{vcc_}, 3, v{lane}")
    E(f"s_and_b32 s3, s2, 7")
    E(f"s_lshr_b32 s{sT}, s2, 3")
    E(f"s_and_b32 s{sT2}, s{sT}, 15")
    E(f"s_mul_i32 s{sM0B}, s{sW}, {WOFF}")
    E(f"v_and_b32 v{vkap}, 31, v{lane}")
    E(f"v_mul_u32_u24 v{vXoff}, 896, v{vkap}")
    E(f"v_lshl_add_u32 v{vXoff}, v{vh}, 4, v{vXoff}")
    E(f"v_lshrrev_b32 v{t1}, 4, v{lane}")
    E(f"v_lshlrev_b32 v{t1}, 2, v{t1}")
    E(f"v_add_u32 v{t1}, v{t1}, v{t0}")
    E(f"v_lshlrev_b32 v{t1}, 13, v{t1}")
    E(f"v_and_b32 v{t2}, 15, v{lane}")
    E(f"v_lshl_add_u32 v{vOffWq}, v{t2}, 4, v{t1}")
    E(f"v_lshl_add_u32 v{t1}, v{vh}, 2, v{t0}")
    E(f"v_lshlrev_b32 v{t1}, 9, v{t1}")
    E(f"v_lshl_add_u32 v{vOffA}, v{vkap}, 4, v{t1}")
    E(f"v_mov_b32 v{vOffB}, v{vOffA}")
    E(f"s_cmp_ge_u32 s{sT}, 16")
    P = sLd
    E(f"s_cselect_b64 s[{S_X}:{S_X+1}], s[{P+10}:{P+11}], s[{P+0}:{P+1}]")
    E(f"s_cselect_b64 s[{S_A}:{S_A+1}], s[{P+12}:{P+13}], s[{P+2}:{P+3}]")
    E(f"s_cselect_b64 s[{S_B}:{S_B+1}], s[{P+14}:{P+15}], s[{P+4}:{P+5}]")
    E(f"s_cselect_b64 s[{S_WQ}:{S_WQ+1}], s[{P+16}:{P+17}], s[{P+6}:{P+7}]")
    E(f"s_cselect_b64 s[{S_WO}:{S_WO+1}], s[{P+18}:{P+19}], s[{P+8}:{P+9}]")
    def add64(b, sreg):
        E(f"s_add_u32 s{b}, s{b}, s{sreg}"); E(f"s_addc_u32 s{b+1}, s{b+1}, 0")
    def fin(b, nrec):
        E(f"s_mov_b32 s{b+2}, {nrec}" if isinstance(nrec, int) else nrec); E(f"s_mov_b32 s{b+3}, 0x20000")
    tmp = sRet
    E(f"s_mul_i32 s{tmp}, s{sT2}, 114688"); E(f"s_mul_i32 s{tmp+1}, s{sW}, 28672"); E(f"s_add_u32 s{tmp}, s{tmp}, s{tmp+1}")
    add64(S_X, tmp); fin(S_X, 28672)
    E(f"s_lshl_b32 s{tmp}, s3, 10"); add64(S_WQ, tmp); fin(S_WQ, f"s_sub_u32 s{S_WQ+2}, {448*8192}, s{tmp}")
    def xload(t): return (f"buffer_load_dwordx4 {ar(4*t,4)}, v{vXoff}, {srd(S_X)}, 0 offen offset:{t*32}", ("x", t))
    for n in range(7):
        for t in range(4 * n, 4 * n + 4): G.do(xload(t))
        for op in dma_static(n): G.do(op)
    E(f"s_lshl_b32 s{tmp}, s{sT2}, 3"); E(f"s_add_u32 s{tmp}, s{tmp}, s3"); E(f"s_lshl_b32 s{tmp}, s{tmp}, 19")
    add64(S_A, tmp); fin(S_A, 524288); add64(S_B, tmp); fin(S_B, 524288)
    E(f"s_mul_i32 s{tmp}, s3, {512*896}"); add64(S_WO, tmp); fin(S_WO, 512 * 896)
    E(f"s_mov_b32 s{S_WS}, s{P+20}"); E(f"s_mov_b32 s{S_WS+1}, s{P+21}")
    E(f"s_mul_i32 s{tmp}, s2, 114688"); E(f"s_mul_i32 s{tmp+1}, s{sW}, 28672"); E(f"s_add_u32 s{tmp}, s{tmp}, s{tmp+1}")
    add64(S_WS, tmp); fin(S_WS, 28672)
    if opt.stamps:
        E(f"s_mov_b32 s{S_DBG}, s{P+20}"); E(f"s_mov_b32 s{S_DBG+1}, s{P+21}")
        E(f"s_lshl_b32 s{tmp}, s2, 2"); E(f"s_add_u32 s{tmp}, s{tmp}, s{sW}"); E(f"s_lshl_b32 s{tmp}, s{tmp}, 8")
        E(f"s_add_u32 s{tmp}, s{tmp}, {64<<20}")
        add64(S_DBG, tmp); fin(S_DBG, 256)
    E(f"s_mov_b32 s{sC}, {f2u(math.log2(math.e) / 16.0):#x}")
    E(f"s_mov_b32 s{sThr}, {f2u(2.0 ** opt.thr_log2) if not opt.force_rare else f2u(0.0):#x}")
    E(f"s_mov_b32 s{sGA}, {4096 - BLK}"); E(f"s_mov_b32 s{sGB}, {4096 - BLK}")
    E(f"s_mov_b32 s{sStepA}, {0 if opt.step0 else 16384}"); E(f"s_mov_b32 s{sStepB}, {0 if opt.step0 else 16384}")
    E(f"s_mov_b32 s{sOffA}, {4*16384}"); E(f"s_mov_b32 s{sOffB}, {3*16384}")
    E(f"s_mov_b32 s{sTrip}, 0")
    E(f"s_mov_b32 s{sKE}, {slot_of[29]*SLOT}"); E(f"s_mov_b32 s{sVE}, {slot_of[35]*SLOT}")
    E(f"s_mov_b32 s{sKO}, {slot_of[36]*SLOT}"); E(f"s_mov_b32 s{sVO}, {slot_of[37]*SLOT}")
    E(f"v_and_b32 v{t1}, 3, v{vkap}"); E(f"v_lshrrev_b32 v{t2}, 3, v{vkap}"); E(f"v_lshl_add_u32 v{t1}, v{t1}, 2, v{t2}")
    E(f"v_mul_u32_u24 v{t1}, {BLK}, v{t1}"); E(f"v_bfe_u32 v{t2}, v{vkap}, 2, 1"); E(f"v_lshl_add_u32 v{t1}, v{t2}, 9, v{t1}")
    E(f"v_lshl_add_u32 v{vKrdL}, v{vh}, 4, v{t1}")
    E(f"v_mul_u32_u24 v{t1}, {WOFF}, v{vr4}"); E(f"v_lshl_add_u32 v{t1}, v{vG1}, 5, v{t1}")
    E(f"v_lshl_add_u32 v{t2}, v{vh}, 9, v{t1}"); E(f"v_lshl_add_u32 v{vVrdL}, v{vcc_}, 3, v{t2}")
    E(f"v_and_b32 v{t3}, 1, v{vcc_}"); E(f"v_lshlrev_b32 v{t3}, 4, v{t3}"); E(f"v_lshrrev_b32 v{t4}, 1, v{vcc_}"); E(f"v_lshl_add_u32 v{t3}, v{t4}, 3, v{t3}")
    E(f"v_add_u32 v{vWrd[0]}, v{t2}, v{t3}")
    E(f"v_add_u32 v{vWrd[1]}, {3*SLOT}, v{vWrd[0]}"); E(f"v_add_u32 v{vWrd[2]}, {6*SLOT}, v{vWrd[0]}")
    E(f"v_add_u32 v{vKrd}, {slot_of[28]*SLOT}, v{vKrdL}")
    E(f"v_mov_b32 v{vL[0]}, 0"); E(f"v_mov_b32 v{vL[1]}, 0")
    stamp(0)

    M = G.M
    frags = []
    def add_frag(first, last, loads_fn, bufbase, nb, idx):
        reg = bufbase + 4 * (idx % nb)
        frags.append(dict(first=first, last=last, loads=loads_fn(reg), reg=reg))
        return reg
    MF = "v_mfma_f32_32x32x16_bf16"
    QFR = vFR; QNB = 8
    qconv = []; zero_q = []
    fi = 0
    slab_start = {}
    for n in range(28):
        g, i7 = divmod(n, 7)
        slab_start[n] = len(M)
        sl = slot_of[n]; areg = vWrd[sl // 3]; base = (sl % 3) * SLOT
        for db in range(4):
            acc = vr(vS[0] + 16 * db, 16)
            for ks in range(4):
                off = base + ks * BLK + db * 64
                i = len(M)
                reg = add_frag(i, i, lambda r: [f"ds_read_b64_tr_b16 {vr(r,2)}, v{areg} offset:{off}",
                                                f"ds_read_b64_tr_b16 {vr(r+2,2)}, v{areg} offset:{off+256}"], QFR, QNB, fi); fi += 1
                c = "0" if (i7 == 0 and ks == 0) else acc
                M.append(f"{MF} {acc}, {vr(reg,4)}, {ar(4*(4*i7+ks),4)}, {c}")
            if i7 == 6:
                last = len(M) - 1
                hb = g >> 1
                for k in range(8):
                    f = hb * 16 + 8 * (g & 1) + 2 * db + (k >> 2)
                    qconv.append([f"v_cvt_pk_bf16_f32 v{vQ + 4*f + (k&3)}, v{vS[0]+16*db+2*k}, v{vS[0]+16*db+2*k+1}", last + 3, None, g, db])
    nQ = len(M)
    for q in qconv:
        g, db = q[3], q[4]
        q[2] = (slab_start[7 * (g + 1)] + 4 * db) if g < 3 else (nQ + (0 if db < 2 else 8))
    zq = [[f"v_accvgpr_write_b32 a{k}, 0", 0, nQ + 30] for k in range(112, 256)]
    for t in range(28):
        lastuse = slab_start[21 + t // 4] + 12 + (t & 3)
        zq += [[f"v_accvgpr_write_b32 a{4*t+k}, 0", lastuse, nQ + 30] for k in range(4)]
    G.queues = [[q[:3] for q in qconv], zq]
    for n in range(0, 28, 2):
        s0 = slab_start[n]
        G.at(s0 + 5, certify(n + 2))
        ops = dma_static(n + 7) + dma_static(n + 8)
        G.spread(ops, s0 + 6, s0 + 29)
    fa = [0]
    def stageA(Sb):
        a0 = len(M)
        for s in range(16):
            i = len(M)
            reg = add_frag(i, i + 1, lambda r: [f"ds_read_b128 {vr(r,4)}, v{vKrd} offset:{s*32}"], vFR, 4, fa[0]); fa[0] += 1
            for hb in range(2):
                acc = vr(Sb + 16 * hb, 16)
                M.append(f"{MF} {acc}, {vr(reg,4)}, {vr(vQ + 4*(hb*16+s),4)}, {'0' if s == 0 else acc}")
        return a0
    def stageB(P0, P1, order="s"):
        b0 = len(M)
        seq = [(s, db) for s in range(2) for db in range(8)] if order == "s" else [(s, db) for db in range(8) for s in range(2)]
        for s, db in seq:
            i = len(M)
            off = 2 * s * BLK + db * 64
            reg = add_frag(i, i + 1, lambda r: [f"ds_read_b64_tr_b16 {vr(r,2)}, v{vVrd} offset:{off}",
                                                f"ds_read_b64_tr_b16 {vr(r+2,2)}, v{vVrd} offset:{off+BLK}"], vFR, 4, fa[0]); fa[0] += 1
            Pb = P0 if s == 0 else P1
            for hb in range(2):
                acc = ar((hb * 8 + db) * 16, 16)
                M.append(f"{MF} {acc}, {vr(reg,4)}, {vr(Pb + 4*hb,4)}, {acc}")
        return b0
    def sm_part(Sb, half, Pb, first):
        F = []; Ex = []; Ad = []; Cv = []
        for p in range(8):
            hb = p & 1; k = p >> 1
            x0 = Sb + 16 * hb + 8 * half + 2 * k
            ta, tb = vTMP[(2 * p) % 8], vTMP[(2 * p + 1) % 8]
            F.append([f"v_fma_f32 v{x0}, v{x0}, s{sC}, -v{vMC[hb]}", f"v_fma_f32 v{x0+1}, v{x0+1}, s{sC}, -v{vMC[hb]}"])
            Ex.append([f"v_exp_f32 v{ta}, v{x0}", f"v_exp_f32 v{tb}, v{x0+1}"])
            if first and k == 0: Ad.append([f"v_add_f32 v{vTS[hb]}, v{ta}, v{tb}"])
            else: Ad.append([f"v_add_f32 v{vTS[hb]}, v{vTS[hb]}, v{ta}", f"v_add_f32 v{vTS[hb]}, v{vTS[hb]}, v{tb}"])
            Cv.append([f"v_cvt_pk_bf16_f32 v{Pb + 4*hb + k}, v{ta}, v{tb}"])
        ops = F[0] + F[1] + Ex[0]
        for p in range(8):
            if p + 2 < 8: ops += F[p + 2]
            if p + 1 < 8: ops += Ex[p + 1]
            ops += Ad[p] + Cv[p]
        return ops
    def nextslot(dst, src):
        return [f"s_add_u32 s{dst}, s{src}, {SLOT}", f"s_cmp_eq_u32 s{dst}, {LDS_BYTES}", f"s_cselect_b32 s{dst}, 0, s{dst}"]
    def dma_dyn(slotreg, voff, srdreg, soff, sg, sstep, tag):
        ops = [f"s_add_u32 m0, s{slotreg}, s{sM0B}", f"s_add_u32 s{sT}, s{soff}, s{sg}",
               (f"buffer_load_dwordx4 v{voff}, {srd(srdreg)}, s{soff} offen{kvmod} lds", tag)]
        for jj in range(1, 4):
            ops.append((f"buffer_load_dwordx4 v{voff}, {srd(srdreg)}, s{sT} offen offset:{jj*BLK}{kvmod} lds", tag))
            ops.append(f"s_add_u32 s{sT}, s{sT}, s{sg}" if jj < 3 else f"s_add_u32 s{soff}, s{soff}, s{sstep}")
        return ops
    a00 = stageA(vS[0])
    G.at(a00 + 8, certify(30))
    G.at(a00 + 24, f"v_add_u32 v{vKrd}, s{sKE}, v{vKrdL}")
    loop_lo = len(M)
    sites = []
    iter_idx = {}
    def iteration(j, dyn=True):
        par = j & 1
        Sc, Sn = vS[par], vS[1 - par]
        P0 = vPA if par == 0 else vPC
        P0n = vPC if par == 0 else vPA
        kS, vSl, kOth, vOth = (sKE, sVE, sKO, sVO) if par == 0 else (sKO, sVO, sKE, sVE)
        a0 = None
        if j < 31:
            a0 = stageA(Sn)
            G.spread(sm_part(Sc, 1, vPB, False), a0, a0 + 27)
            if dyn:
                G.before(a0, lambda: 0)
                G.at(a0, f"s_cmp_eq_u32 s{sTrip}, 14"); G.at(a0, f"s_cbranch_scc1 L_fix{par}"); G.at(a0, f"L_fixret{par}:")
                ops = dma_dyn(vSl, vOffA, S_A, sOffA, sGA, sStepA, ("slab", 35 + 2 * j)) + nextslot(vSl, kS) + \
                      dma_dyn(kOth, vOffB, S_B, sOffB, sGB, sStepB, ("slab", 36 + 2 * j))
                G.spread(ops, a0 + opt.dma_lo, a0 + opt.dma_hi)
                G.at(a0 + 22, f"v_add_u32 v{vVrd}, s{vSl}, v{vVrdL}")
            else:
                G.spread(dma_static(35 + 2 * j) + dma_static(36 + 2 * j), a0 + 1, a0 + 30)
                G.at(a0 + 22, f"v_add_u32 v{vVrd}, {slot_of[30+2*j]*SLOT}, v{vVrdL}")
            chk = a0 + 29
            G.at(chk, f"v_max_f32 v{vTMP[8]}, v{vTS[0]}, v{vTS[1]}")
            G.at(chk + 1, f"v_cmp_nge_f32 vcc, s{sThr}, v{vTMP[8]}")
            site = f"{par}" if dyn else f"t{j}"
            G.at(chk + 2, f"s_cbranch_vccnz L_rare{site}"); G.at(chk + 2, f"L_back{site}:")
            if (site, par) not in sites: sites.append((site, par))
        b0 = stageB(P0, vPB, "s" if j < 31 else "d")
        if j == 31:
            for op in sm_part(Sc, 1, vPB, False): G.before(b0, op)
            G.before(b0, f"v_max_f32 v{vTMP[8]}, v{vTS[0]}, v{vTS[1]}")
            G.before(b0, f"v_cmp_nge_f32 vcc, s{sThr}, v{vTMP[8]}")
            G.before(b0, "s_nop 1")
            G.before(b0, "s_cbranch_vccnz L_raret31"); G.before(b0, "L_backt31:")
            sites.append(("t31", par))
        G.at(b0, f"v_add_f32 v{vL[0]}, v{vL[0]}, v{vTS[0]}"); G.at(b0 + 1, f"v_add_f32 v{vL[1]}, v{vL[1]}, v{vTS[1]}")
        if j < 31:
            G.spread(sm_part(Sn, 0, P0n, True), b0 + 3, b0 + 31)
            G.at(b0 + 14, certify(32 + 2 * j))
            if j < 30:
                if dyn:
                    for k, op in enumerate(nextslot(kOth, vSl)): G.at(b0 + 16 + 2 * k, op)
                    G.at(b0 + 22, f"v_add_u32 v{vKrd}, s{kOth}, v{vKrdL}")
            else:
                G.at(b0 + 22, f"v_add_u32 v{vVrd}, {slot_of[92]*SLOT}, v{vVrdL}")
        if dyn and par == 1:
            G.at(b0 + 28, f"s_add_u32 s{sTrip}, s{sTrip}, 1"); G.at(b0 + 30, f"s_cmp_lt_u32 s{sTrip}, 15")
            G.at(b0 + 31, "s_cbranch_scc1 L_loop")
        iter_idx[j] = (a0, b0)
        return a0, b0
    trips = []
    for tr in range(15):
        lo = len(M); iteration(2 * tr); iteration(2 * tr + 1); trips.append((lo, len(M)))
    iteration(30, dyn=False)
    a31, b31 = iteration(31, dyn=False)
    b30 = iter_idx[30][1]
    G.fixed[b30 + 22] = [x for x in G.fixed[b30 + 22] if not (isinstance(x, str) and x.startswith(f"v_add_u32 v{vVrd}"))]
    G.at(b30 + 24, f"v_add_u32 v{vVrd}, {slot_of[92]*SLOT}, v{vVrdL}")
    free = []
    G.spread(dma_static(97) + dma_static(98), b31 + 1, b31 + 30)
    vOrd = vTMP[8:11]; vInv = (vMC[0], vMC[1]); vSt = vPA; vStOff = vTS[0]
    OFR = vS[1]; ONB = 8
    o0 = len(M)
    oslab_start = {}
    fo = 0
    oq = []
    order = [wo_slab(i) for i in range(28)]
    cons = [90, 92] + order
    nxt = 99
    for i in range(0, 28, 2):
        fr = [slot_of[cons[i]], slot_of[cons[i + 1]]]
        for s_ in fr:
            if nxt < NSLAB: slot_of[nxt] = s_; nxt += 1
    for i in range(28):
        n = wo_slab(i); ng, dq = divmod(i, 4)
        oslab_start[i] = len(M)
        sl = slot_of[n]; areg = vOrd[sl // 3]; base = (sl % 3) * SLOT
        blockmajor = dq in (0, 3) and not (ng == 0 and dq == 0)
        seq = [(nb, s) for nb in range(2) for s in range(8)] if blockmajor else [(nb, s) for s in range(8) for nb in range(2)]
        for nb, s in seq:
            off = base + (s >> 1) * BLK + (s & 1) * 512 + nb * 64
            k = len(M)
            reg = add_frag(k, k, lambda r: [f"ds_read_b64_tr_b16 {vr(r,2)}, v{areg} offset:{off}",
                                            f"ds_read_b64_tr_b16 {vr(r+2,2)}, v{areg} offset:{off+256}"], OFR, ONB, fo); fo += 1
            acc = vr(vS[0] + 16 * nb, 16)
            c = "0" if (dq == 0 and s == 0) else acc
            M.append(f"{MF} {acc}, {vr(reg,4)}, {vr(vQ + 4*(8*dq+s),4)}, {c}")
            if dq == 3 and s == 7:
                last = len(M) - 1
                dl = (oslab_start[i] + 16 + 8 * nb) if ng < 6 else 10 ** 9
                for sh in range(2):
                    for k2 in range(4):
                        oq.append([f"v_cvt_pk_bf16_f32 v{vSt + 8*nb + 4*sh + k2}, v{vS[0]+16*nb+8*sh+2*k2}, v{vS[0]+16*nb+8*sh+2*k2+1}", last + 3, dl])
                    if nb == 0 and sh == 0: oq.append([f"s_mov_b32 s{sT2}, {ng*4096}", last + 3, dl])
                    oq.append([(f"buffer_store_dwordx4 {vr(vSt + 8*nb + 4*sh, 4)}, v{vStOff}, {srd(S_WS)}, s{sT2} offen offset:{(nb*2+sh)*1024}{opt.store_mod}", ("st", 0)), last + 3, dl])
    nM = len(M)
    nxt = 99
    for i in range(0, 28, 2):
        s0 = oslab_start[i]
        nmax = max(order[i + 1], order[i + 2] if i + 2 < 28 else 0)
        G.at(s0 + 5, certify(nmax))
        ops = []
        for _ in range(2):
            if nxt < NSLAB: ops += dma_static(nxt); nxt += 1
        if ops: G.spread(ops, s0 + 6, s0 + 29)
    fin_ops = []
    for hb in range(2):
        fin_ops += [f"v_mov_b32 v{vTMP[hb]}, v{vL[hb]}"]
    fin_ops += ["s_nop 0"]
    for hb in range(2): fin_ops += [f"v_permlane32_swap_b32 v{vL[hb]}, v{vTMP[hb]}"]
    for hb in range(2): fin_ops += [f"v_add_f32 v{vL[hb]}, v{vL[hb]}, v{vTMP[hb]}"]
    for hb in range(2): fin_ops += [f"v_rcp_f32 v{vInv[hb]}, v{vL[hb]}"]
    tl, tu, tv = vTMP[2], vTMP[3], vTMP[4]
    fin_ops += [f"v_mbcnt_lo_u32_b32 v{tl}, -1, 0", f"v_mbcnt_hi_u32_b32 v{tl}, -1, v{tl}",
                f"v_lshlrev_b32 v{vStOff}, 4, v{tl}",
                f"v_bfe_u32 v{tu}, v{tl}, 2, 2", f"v_mul_u32_u24 v{tu}, {WOFF}, v{tu}",
                f"v_bfe_u32 v{tv}, v{tl}, 4, 1", f"v_lshl_add_u32 v{tu}, v{tv}, 5, v{tu}",
                f"v_lshrrev_b32 v{tv}, 5, v{tl}", f"v_lshl_add_u32 v{tu}, v{tv}, 7, v{tu}",
                f"v_and_b32 v{tv}, 1, v{tl}", f"v_lshl_add_u32 v{tu}, v{tv}, 4, v{tu}",
                f"v_bfe_u32 v{tv}, v{tl}, 1, 1", f"v_lshl_add_u32 v{vOrd[0]}, v{tv}, 3, v{tu}",
                f"v_add_u32 v{vOrd[1]}, {3*SLOT}, v{vOrd[0]}", f"v_add_u32 v{vOrd[2]}, {6*SLOT}, v{vOrd[0]}"]
    G.spread(fin_ops, b31 + 2, b31 + 8)
    cq = []
    ctmp = [vPC + k for k in range(8)] if False else None
    ct = [vPA + k for k in range(8)]
    for f in range(32):
        hb, rem = divmod(f, 16); db, sh = divmod(rem, 2)
        areg = (hb * 8 + db) * 16 + 8 * sh
        ready = b31 + 4 * db + 3 + 3
        ready = max(ready, b31 + 10)
        dq, s = divmod(f, 8)
        if dq in (0, 1, 2): dl = oslab_start[dq] + 2 * s
        else: dl = oslab_start[dq] + s
        ops = [f"v_accvgpr_read_b32 v{ct[k]}, a{areg+k}" for k in range(8)]
        ops += [f"v_mul_f32 v{ct[k]}, v{ct[k]}, v{vInv[hb]}" for k in range(8)]
        ops += [f"v_cvt_pk_bf16_f32 v{vQ+4*f+k}, v{ct[2*k]}, v{ct[2*k+1]}" for k in range(4)]
        ops += ["s_nop 0"] if False else []
        cq += [[op, ready, dl - 1] for op in ops]
    lastuse = {}
    for k, fr in enumerate(frags):
        two = fr["last"] > fr["first"]
        la = 7
        g = fr["first"] - la
        prev = lastuse.get(fr["reg"], -1)
        g = max(g, prev)
        lastuse[fr["reg"]] = fr["last"]
        fr["gap"] = g
    for fr in frags:
        if fr["first"] >= o0: fr["gap"] = max(fr["gap"], b31 + 9)
    pre_frags = []
    for fr in frags:
        if fr["gap"] < 0: pre_frags += fr["loads"]
        else:
            ld = fr["loads"]
            G.fixed.setdefault(fr["gap"], []).insert(0, ld[0])
            if len(ld) > 1:
                if fr["last"] > fr["first"]: G.fixed.setdefault(fr["gap"] + 1, []).insert(0, ld[1])
                else: G.fixed[fr["gap"]].insert(1, ld[1])
    certify(0)()
    stamp(1)
    for t in pre_frags: E(t)
    G.run(0, nQ)
    stamp(2)
    G.run(nQ, loop_lo)
    assert not G.queues[0] and not G.queues[1], (len(G.queues[0]), len(G.queues[1]))
    G.queues = []
    Sb = vS[0]
    E("s_nop 7"); E("s_nop 3")
    for hb in range(2):
        x = Sb + 16 * hb; t = vTMP[hb]
        E(f"v_max3_f32 v{t}, v{x}, v{x+1}, v{x+2}")
        for k in range(3, 15, 2): E(f"v_max3_f32 v{t}, v{t}, v{x+k}, v{x+k+1}")
        E(f"v_max_f32 v{t}, v{t}, v{x+15}")
    for hb in range(2): E(f"v_mov_b32 v{vTMP[2+hb]}, v{vTMP[hb]}")
    E("s_nop 0")
    for hb in range(2): E(f"v_permlane32_swap_b32 v{vTMP[hb]}, v{vTMP[2+hb]}")
    for hb in range(2): E(f"v_max_f32 v{vTMP[hb]}, v{vTMP[hb]}, v{vTMP[2+hb]}")
    for hb in range(2): E(f"v_mul_f32 v{vMC[hb]}, s{sC}, v{vTMP[hb]}")
    for op in sm_part(Sb, 0, vPA, True): E(op)
    if opt.drop: E("s_mov_b64 vcc, 0")
    stamp(3)
    text_marks = []
    n_before = len(st.ins)
    E("L_loop:")
    body_txt = None
    for (lo, hi) in trips:
        n0 = len(st.ins)
        G.run(lo, hi)
        txt = [x.text for x in st.ins[n0:]]
        if body_txt is None: body_txt = txt; body_rng = (n0, len(st.ins))
        else:
            if txt != body_txt:
                for a, b in zip(txt, body_txt):
                    if a != b: print("DIFF", a, "|", b); break
                raise SystemExit("loop trips differ")
    n_after = len(st.ins)
    stamp(4)
    G.run(trips[-1][1], b31)
    G.queues = [cq, oq]
    G.run(b31, o0)
    stamp(5)
    G.run(o0, nM)
    E("s_nop 7"); E("s_nop 3")
    for q in G.queues:
        while q: G.do(q.pop(0)[0])
    stamp(6)
    E("s_waitcnt vmcnt(0)")
    stamp(7)
    stamps_out(8)
    E("L_end:")
    E("s_endpgm")
    probs = check_hazards(st.ins, "main")
    for x in st.nops: print("auto nop", x, file=sys.stderr)
    dropk = set(opt.drop.split(",")) if opt.drop else set()
    out = [x.text for x in st.ins[:body_rng[0]]] + [x.text for x in st.ins[body_rng[0]:body_rng[1]] if x.kind not in dropk] + [x.text for x in st.ins[n_after:]]
    ool = Stream(); O = ool.emit
    O("L_fix0:")
    for k in range(3): O(f"s_mov_b32 s{S_A+k}, s{S_WO+k}")
    def wo_voff(dst):
        a, b = vTMP[9], vTMP[10]
        O(f"v_mbcnt_lo_u32_b32 v{a}, -1, 0"); O(f"v_mbcnt_hi_u32_b32 v{a}, -1, v{a}")
        O(f"v_lshrrev_b32 v{b}, 3, v{a}"); O(f"v_lshlrev_b32 v{b}, 2, v{b}"); O(f"v_add_u32 v{b}, s{sW}, v{b}")
        O(f"v_mul_u32_u24 v{b}, 896, v{b}"); O(f"v_and_b32 v{a}, 7, v{a}"); O(f"v_lshl_add_u32 v{dst}, v{a}, 4, v{b}")
    wo_voff(vOffA)
    O(f"s_mov_b32 s{sOffA}, {slab_info(91)[1]}"); O(f"s_mov_b32 s{sGA}, {GS['wo'] - BLK}"); O(f"s_mov_b32 s{sStepA}, {slab_info(93)[1] - slab_info(91)[1]}")
    O("s_branch L_fixret0")
    O("L_fix1:")
    for k in range(3): O(f"s_mov_b32 s{S_B+k}, s{S_WO+k}")
    O(f"v_mov_b32 v{vOffB}, v{vOffA}")
    O(f"s_mov_b32 s{sOffB}, {slab_info(94)[1]}"); O(f"s_mov_b32 s{sGB}, {GS['wo'] - BLK}")
    O("s_branch L_fixret1")
    for site, par in sites:
        O(f"L_rare{site}:"); O(f"s_call_b64 s[{sRet}:{sRet+1}], L_rare_fn{par}"); O(f"s_branch L_back{site}")
    for par in range(2):
        Sc = vS[par]; P0 = vPA if par == 0 else vPC
        O(f"L_rare_fn{par}:")
        O("s_nop 7"); O("s_nop 7")
        d = vTMP[8:10]; e = vTMP[10:12]
        for hb in range(2):
            x = Sc + 16 * hb; t = d[hb]
            O(f"v_max3_f32 v{t}, v{x}, v{x+1}, v{x+2}")
            for k in range(3, 15, 2): O(f"v_max3_f32 v{t}, v{t}, v{x+k}, v{x+k+1}")
            O(f"v_max3_f32 v{t}, v{t}, v{x+15}, 0")
        for hb in range(2): O(f"v_mov_b32 v{e[hb]}, v{d[hb]}")
        O("s_nop 0")
        for hb in range(2): O(f"v_permlane32_swap_b32 v{d[hb]}, v{e[hb]}")
        for hb in range(2): O(f"v_max_f32 v{d[hb]}, v{d[hb]}, v{e[hb]}")
        for hb in range(2): O(f"v_add_f32 v{vMC[hb]}, v{vMC[hb]}, v{d[hb]}")
        for hb in range(2): O(f"v_exp_f32 v{e[hb]}, -v{d[hb]}")
        O("s_nop 0")
        for hb in range(2): O(f"v_mul_f32 v{vL[hb]}, v{vL[hb]}, v{e[hb]}")
        for hb in range(2):
            for k in range(8):
                x0 = Sc + 16 * hb + 2 * k; ta, tb = vTMP[0], vTMP[1]
                Pb = (P0 if k < 4 else vPB) + 4 * hb + (k & 3)
                O(f"v_sub_f32 v{x0}, v{x0}, v{d[hb]}"); O(f"v_sub_f32 v{x0+1}, v{x0+1}, v{d[hb]}")
                O(f"v_exp_f32 v{ta}, v{x0}"); O(f"v_exp_f32 v{tb}, v{x0+1}"); O("s_nop 0")
                if k == 0: O(f"v_add_f32 v{vTS[hb]}, v{ta}, v{tb}")
                else: O(f"v_add_f32 v{vTS[hb]}, v{vTS[hb]}, v{ta}"); O(f"v_add_f32 v{vTS[hb]}, v{vTS[hb]}, v{tb}")
                O(f"v_cvt_pk_bf16_f32 v{Pb}, v{ta}, v{tb}")
        O("s_branch L_rescale")
    O("L_rescale:")
    e = vTMP[10:12]
    for hb in range(2):
        for k0 in range(0, 128, 8):
            for k in range(8): O(f"v_accvgpr_read_b32 v{vTMP[k]}, a{hb*128+k0+k}")
            for k in range(8): O(f"v_mul_f32 v{vTMP[k]}, v{vTMP[k]}, v{e[hb]}")
            for k in range(8): O(f"v_accvgpr_write_b32 a{hb*128+k0+k}, v{vTMP[k]}")
    O("s_nop 3")
    O(f"s_setpc_b64 s[{sRet}:{sRet+1}]")
    probs += check_hazards(ool.ins, "ool")
    out += [x.text for x in ool.ins]
    stats = []
    cur = 0; gi = 0
    for x in st.ins[body_rng[0]:body_rng[1]]:
        if x.kind == "mfma": stats.append(cur); cur = 0
        else: cur += x.cost
    stats.append(cur)
    return out, probs, stats

def reduce_kernel():
    st = Stream(); E = st.emit
    E("s_cmp_ge_u32 s2, 896"); E("s_cbranch_scc1 L_rend")
    E("s_load_dwordx2 s[4:5], s[0:1], 96"); E("s_load_dwordx2 s[8:9], s[0:1], 80")
    E(f"s_mul_hi_u32 s12, s2, {(2**32 + 6)//7}")
    E("s_mul_i32 s13, s12, 7"); E("s_sub_u32 s13, s2, s13")
    E("s_lshr_b32 s14, s12, 2"); E("s_and_b32 s15, s12, 3")
    E("v_lshrrev_b32 v1, 3, v0")
    E("v_and_b32 v2, 7, v0")
    E("v_lshlrev_b32 v3, 9, v2"); E("v_lshl_add_u32 v3, v1, 4, v3")
    E(f"s_mul_i32 s16, s14, {8*114688}"); E("s_mul_i32 s17, s15, 28672"); E("s_add_u32 s16, s16, s17")
    E("s_lshl_b32 s17, s13, 12"); E("s_add_u32 s16, s16, s17")
    E("s_and_b32 s18, s14, 15"); E("s_lshr_b32 s19, s14, 4")
    E(f"s_mul_i32 s18, s18, {128*1792}"); E("s_mul_i32 s19, s19, 896"); E("s_add_u32 s18, s18, s19")
    E(f"s_mul_i32 s19, s15, {32*1792}"); E("s_add_u32 s18, s18, s19"); E("s_lshl_b32 s19, s13, 7"); E("s_add_u32 s18, s18, s19")
    E("v_mul_u32_u24 v4, 1792, v1"); E("v_lshl_add_u32 v4, v2, 4, v4")
    E("s_add_u32 s4, s4, s16"); E("s_addc_u32 s5, s5, 0"); E(f"s_mov_b32 s6, {7*114688+4096}"); E("s_mov_b32 s7, 0x20000")
    E(f"s_mov_b32 s10, {16*128*1792}"); E("s_mov_b32 s11, 0x20000")
    for k in range(8):
        E(f"s_mov_b32 s20, {k*114688}")
        E(f"buffer_load_dwordx4 v[{8+4*k}:{11+4*k}], v3, s[4:7], s20 offen")
    A = 40
    for k in range(8):
        for d in range(4):
            src = 8 + 4 * k + d
            if k == 0:
                E(f"v_lshlrev_b32 v{A+2*d}, 16, v{src}"); E(f"v_and_b32 v{A+2*d+1}, 0xffff0000, v{src}")
            else:
                E(f"v_lshlrev_b32 v{48+2*d}, 16, v{src}"); E(f"v_and_b32 v{48+2*d+1}, 0xffff0000, v{src}")
                E(f"v_add_f32 v{A+2*d}, v{A+2*d}, v{48+2*d}"); E(f"v_add_f32 v{A+2*d+1}, v{A+2*d+1}, v{48+2*d+1}")
    for d in range(4): E(f"v_cvt_pk_bf16_f32 v{56+d}, v{A+2*d}, v{A+2*d+1}")
    E("buffer_store_dwordx4 v[56:59], v4, s[8:11], s18 offen")
    E("L_rend:"); E("s_endpgm")
    return [x.text for x in st.ins], check_hazards(st.ins, "red")

HDR = open("cdna_kernels/" + NAME + ".s.ref").read().split("; Override launch")[0]

def kd(name, vgpr, acc, sgpr=102):
    return f""".amdhsa_kernel {name}
  .amdhsa_next_free_vgpr {vgpr}
  .amdhsa_next_free_sgpr {sgpr}
  .amdhsa_accum_offset {acc}
  .amdhsa_group_segment_fixed_size 0
  .amdhsa_kernarg_size 104
  .amdhsa_user_sgpr_count 2
  .amdhsa_user_sgpr_kernarg_segment_ptr 1
  .amdhsa_system_sgpr_workgroup_id_x 1
  .amdhsa_float_denorm_mode_32 3
.end_amdhsa_kernel
"""

def fmt(lines):
    return "".join((l if l.endswith(":") else "    " + l) + "\n" for l in lines)

def generate(opt):
    main, probs, stats = build(opt)
    red, p2 = reduce_kernel()
    for p in probs + p2: print(p, file=sys.stderr)
    s = HDR
    s += f"; @launch kernel={NAME}_kernel grid=(256,1,1) block=(256,1,1) lds={LDS_BYTES}\n"
    s += f"; @launch kernel=gqa_reduce_kernel grid=(896,1,1) block=(256,1,1) lds=0\n"
    s += '.amdgcn_target "amdgcn-amd-amdhsa--gfx950"\n.text\n'
    s += f".globl {NAME}_kernel\n.p2align 8\n.type {NAME}_kernel,@function\n{NAME}_kernel:\n" + fmt(main)
    s += ".globl gqa_reduce_kernel\n.p2align 8\n.type gqa_reduce_kernel,@function\ngqa_reduce_kernel:\n" + fmt(red)
    s += '.section .rodata,"a"\n.p2align 6\n' + kd(NAME + "_kernel", 512, 256) + ".p2align 6\n" + kd("gqa_reduce_kernel", 64, 64, 32)
    return s, probs + p2, stats

if __name__ == "__main__":
    opt = Opt()
    outp = "cdna_kernels/" + NAME + ".s"
    for a in sys.argv[1:]:
        if a.startswith("out="): outp = a[4:]
        else:
            k, v = a.split("="); cur = getattr(opt, k)
            setattr(opt, k, (v not in ("0", "False")) if isinstance(cur, bool) else type(cur)(v))
    s, probs, stats = generate(opt)
    open(outp, "w").write(s)
    print("gap costs:", stats, "max", max(stats), "sum", sum(stats))
    print("hazards:", len(probs), "bytes", len(s))
```
